```python
import torch

def _softmax(x, axis=-1):
    return torch.softmax(x, dim=axis)
def _gelu(x):
    return torch.nn.functional.gelu(x, approximate="tanh")
def _silu(x):
    return torch.nn.functional.silu(x)
def _sigmoid(x):
    return torch.sigmoid(x)
def _layernorm(x, axis=-1, eps=1e-5):
    m = x.mean(dim=axis, keepdim=True)
    v = x.var(dim=axis, keepdim=True, unbiased=False)
    return (x - m) / torch.sqrt(v + eps)
def _scatter_add(tgt, idx, src, axis=0):
    return tgt.clone().index_add_(axis, idx, src)
def _segment_sum(src, seg, n):
    out = torch.zeros((n,) + src.shape[1:], dtype=src.dtype)
    return out.index_add_(0, seg, src)
def _pad(x, pw):
    flat = tuple(v for pair in reversed(pw) for v in pair)
    return torch.nn.functional.pad(x, flat)

kernel_name = 'parallel_sum__grouped_kv_mqa__glu_gated_swiglu__prompt'

def setup_inputs():

    _w = (lambda a: (lambda t: t.to(torch.bfloat16) if t.is_floating_point() else t)(torch.as_tensor(a)))
    def _A_setup():
        B, S, D, H = 1, 2048, 576, 32
        Dh = D // H
        return {
            "x": _w((lambda *s: torch.randn(*s, dtype=torch.bfloat16) * 0.05)(B, S, D)),
            "wq": _w((lambda *s: torch.randn(*s, dtype=torch.bfloat16) * 0.05)(D, H * Dh)),
            "wk": _w((lambda *s: torch.randn(*s, dtype=torch.bfloat16) * 0.05)(D, Dh)),
            "wv": _w((lambda *s: torch.randn(*s, dtype=torch.bfloat16) * 0.05)(D, Dh)),
            "wo": _w((lambda *s: torch.randn(*s, dtype=torch.bfloat16) * 0.05)(H * Dh, D)),
        }
    _A_in = _A_setup()

    def _B_setup():
        B, S, D, F = 1, 2048, 576, 4608
        return {
            "x": _w((lambda *s: torch.randn(*s, dtype=torch.bfloat16) * 0.05)(B, S, D)),
            "w1": _w((lambda *s: torch.randn(*s, dtype=torch.bfloat16) * 0.4)(D, F) * (2.0 / D) ** 0.5),
            "w3": _w((lambda *s: torch.randn(*s, dtype=torch.bfloat16) * 0.4)(D, F) * (2.0 / D) ** 0.5),
            "w2": _w((lambda *s: torch.randn(*s, dtype=torch.bfloat16) * 0.4)(F, D) * (2.0 / F) ** 0.5),
        }
    _B_in = _B_setup()

    return {
        "A_x": _A_in["x"],
        "A_wq": _A_in["wq"],
        "A_wk": _A_in["wk"],
        "A_wv": _A_in["wv"],
        "A_wo": _A_in["wo"],
        "B_x": _B_in["x"],
        "B_w1": _B_in["w1"],
        "B_w3": _B_in["w3"],
        "B_w2": _B_in["w2"],
    }

def reference(A_x, A_wq, A_wk, A_wv, A_wo, B_x, B_w1, B_w3, B_w2):
    def _A_ref(x, wq, wk, wv, wo):
        B, S, D = x.shape
        H = 32
        Dh = D // H
        q = (lambda x, *d: x.permute(*d))((x @ wq).reshape(B, S, H, Dh), 0, 2, 1, 3)
        k = x @ wk
        v = x @ wv
        scores = torch.einsum("bhqd,bkd->bhqk", q, k) * (Dh ** -0.5)
        p = _softmax(scores, axis=-1)
        o = torch.einsum("bhqk,bkd->bhqd", p, v)
        return (lambda x, *d: x.permute(*d))(o, 0, 2, 1, 3).reshape(B, S, H * Dh) @ wo

    def _B_ref(x, w1, w3, w2):
        gate = torch.einsum("bsd,df->bsf", x, w1)
        up = torch.einsum("bsd,df->bsf", x, w3)
        h = _silu(gate) * up
        out = torch.einsum("bsf,fd->bsd", h, w2)
        return out

    x = A_x
    xn = _layernorm(x, axis=-1)
    return x + _A_ref(xn, A_wq, A_wk, A_wv, A_wo) + _B_ref(xn, B_w1, B_w3, B_w2)
```

```python
KNAME = "parallel_sum__grouped_kv_mqa__glu_gated_swiglu__prompt"

S, D, F, H, DH = 2048, 576, 4608, 32, 18

WS_H  = 0x0000000
WS_Q1 = 0x1200000
WS_Q2 = 0x1400000
WS_KV = 0x1440000
WS_O  = 0x1480000
WS_P  = 0x1700000
WS_SIZE = 0x10000000

KV_CHUNK = 20480
KV_K1 = 0
KV_V = 8192
KV_K2 = 18432
V_BLK = 640

KA_X, KA_WQ, KA_WK, KA_WV, KA_WO, KA_BX, KA_W1, KA_W3, KA_W2, KA_OUT, KA_DBG, KA_WS = [8 * i for i in range(12)]


class Asm:
    def __init__(self):
        self.lines = []

    def __call__(self, s):
        for l in s.strip("\n").split("\n"):
            self.lines.append("    " + l.strip())

    def label(self, l):
        self.lines.append(l + ":")

    def raw(self, s):
        self.lines.append(s)

    def comment(self, s):
        self.lines.append("    ; " + s)

    def extend(self, lst):
        for l in lst:
            self(l)

    def text(self):
        return "\n".join(self.lines) + "\n"


def vr(b, n=1):
    return f"v{b}" if n == 1 else f"v[{b}:{b+n-1}]"


def sr(b, n=1):
    return f"s{b}" if n == 1 else f"s[{b}:{b+n-1}]"


def srd(a, dst, base, nbytes):
    a(f"s_mov_b32 s{dst}, s{base}")
    a(f"s_and_b32 s{dst+1}, s{base+1}, 0xffff")
    a(f"s_mov_b32 s{dst+2}, {nbytes:#x}")
    a(f"s_mov_b32 s{dst+3}, 0x00020000")


def mfma32(d, a_, b_, c=None):
    cs = vr(d, 16) if c is None else c
    return f"v_mfma_f32_32x32x16_bf16 {vr(d,16)}, {vr(a_,4)}, {vr(b_,4)}, {cs}"


def kernel_begin(a, name):
    a.raw(f".globl {name}")
    a.raw(".p2align 8")
    a.raw(f".type {name},@function")
    a.label(name)


def kernel_desc(name, vgpr, sgpr=102):
    acc = (vgpr + 3) // 4 * 4
    return f""".amdhsa_kernel {name}
  .amdhsa_next_free_vgpr {vgpr}
  .amdhsa_next_free_sgpr {sgpr}
  .amdhsa_accum_offset {acc}
  .amdhsa_group_segment_fixed_size 0
  .amdhsa_kernarg_size 96
  .amdhsa_user_sgpr_count 2
  .amdhsa_user_sgpr_kernarg_segment_ptr 1
  .amdhsa_system_sgpr_workgroup_id_x 1
.end_amdhsa_kernel
"""


def interleave(mfmas, fillers, start=0, per=None):
    n = len(mfmas) - start
    out = []
    slots = [[] for _ in mfmas]
    nf = len(fillers)
    for i, f in enumerate(fillers):
        if per is None:
            idx = start + (i * n) // max(nf, 1)
        else:
            idx = min(start + i // per, len(mfmas) - 1)
        slots[idx].extend(f)
    for m, s in zip(mfmas, slots):
        out.append(m)
        out.extend(s)
    return out

import os
STAMP = int(os.environ.get("STAMP", "0"))
WS_DBG = 0x4000000

def stamp(a, i):
    if STAMP:
        a(f"s_memtime s[{68+4*i}:{69+4*i}]")
        a(f"s_memrealtime s[{70+4*i}:{71+4*i}]")

def stamp_begin(a):
    if STAMP:
        for i in range(8):
            a(f"s_mov_b32 s{68+4*i}, 0")
            a(f"s_mov_b32 s{70+4*i}, 0")
        stamp(a, 0)

def stamp_end(a, kidx, swave, nwaves, sws, vtmp):
    if not STAMP:
        return
    a("s_waitcnt vmcnt(0)")
    stamp(a, 7)
    a("s_waitcnt lgkmcnt(0)")
    a("s_mov_b64 exec, 1")
    for i in range(8):
        a(f"v_mov_b32 v{vtmp+i}, s{68+4*i}")
        a(f"v_mov_b32 v{vtmp+8+i}, s{70+4*i}")
    a(f"s_getreg_b32 s100, hwreg(HW_REG_HW_ID)")
    a(f"v_mov_b32 v{vtmp+16}, s100")
    a(f"s_getreg_b32 s100, hwreg(HW_REG_XCC_ID)")
    a(f"v_mov_b32 v{vtmp+17}, s100")
    a(f"s_mul_i32 s100, s2, {nwaves}")
    a(f"s_add_u32 s100, s100, s{swave}")
    a(f"s_lshl_b32 s100, s100, 7")
    a(f"s_add_u32 s100, s100, {WS_DBG + kidx * 0x100000}")
    a(f"v_mov_b32 v{vtmp+20}, 0")
    for i in range(5):
        a(f"buffer_store_dwordx4 v[{vtmp+4*i}:{vtmp+4*i+3}], v{vtmp+20}, s[{sws}:{sws+3}], s100 offen offset:{16*i}")

ST_FLAGS = os.environ.get("STFLAGS", "sc1")
if ST_FLAGS: ST_FLAGS = " " + ST_FLAGS


class Filt:
    def __init__(self, a, drop):
        self.a = a
        self.drop = drop
    def __call__(self, l):
        if not any(d in l for d in self.drop):
            self.a(l)
    def extend(self, ls):
        for l in ls:
            self(l)
    def raw(self, l): self.a.raw(l)
    def label(self, l): self.a.label(l)
    def comment(self, l): self.a.comment(l)

def abl(name):
    v = os.environ.get(name, "")
    return [x for x in v.split("|") if x]


CODEPF = int(os.environ.get("CODEPF", "1"))
_cpf = [0]

def code_prefetch(a, start_label, end_label, seg_sgpr, vlane, vt, s0, nseg_max=4):
    if not CODEPF:
        return
    _cpf[0] += 1
    L = f"CPF{_cpf[0]}"
    a(f"s_getpc_b64 s[{s0}:{s0+1}]")
    a.label(L)
    a(f"s_add_u32 s{s0}, s{s0}, {start_label}-{L}")
    a(f"s_addc_u32 s{s0+1}, s{s0+1}, 0")
    a(f"s_lshl_b32 s{s0+2}, s{seg_sgpr}, 13")
    a(f"v_lshl_add_u32 v{vt+2}, v{vlane}, 7, s{s0+2}")
    a(f"v_mov_b32 v{vt+1}, s{s0+1}")
    a(f"v_add_co_u32 v{vt}, vcc, s{s0}, v{vt+2}")
    a("s_nop 1")
    a(f"v_addc_co_u32 v{vt+1}, vcc, 0, v{vt+1}, vcc")
    a(f"v_cmp_gt_u32 vcc, {end_label}-{start_label}, v{vt+2}")
    a(f"s_and_saveexec_b64 s[{s0}:{s0+1}], vcc")
    a(f"s_cbranch_execz {L}_skip")
    a(f"global_load_dword v{vt+3}, v[{vt}:{vt+1}], off")
    a.label(f"{L}_skip")
    a("s_mov_b64 exec, -1")
```

```python
import sys, importlib
from common import *

HEADER = open("cdna_kernels/" + KNAME + ".s.ref").read().split("; Override launch")[0]

def build(mods, out):
    ms = [importlib.import_module(m) for m in mods]
    a = Asm()
    for m in ms:
        m.gen(a)
    txt = HEADER
    for m in ms:
        txt += m.LAUNCH + "\n"
    txt += '.amdgcn_target "amdgcn-amd-amdhsa--gfx950"\n.text\n'
    txt += a.text()
    txt += '.section .rodata,"a"\n'
    for m in ms:
        txt += ".p2align 6\n" + m.DESC
    open(out, "w").write(txt)

if __name__ == "__main__":
    out = sys.argv[1]
    build(sys.argv[2:], out)
```

```python
KNAME = "parallel_sum__grouped_kv_mqa__glu_gated_swiglu__prompt"

S, D, F, H, DH = 2048, 576, 4608, 32, 18

WS_H  = 0x0000000
WS_Q1 = 0x1200000
WS_Q2 = 0x1400000
WS_KV = 0x1440000
WS_O  = 0x1480000
WS_P  = 0x1700000
WS_SIZE = 0x10000000

KV_CHUNK = 20480
KV_K1 = 0
KV_V = 8192
KV_K2 = 18432
V_BLK = 640

KA_X, KA_WQ, KA_WK, KA_WV, KA_WO, KA_BX, KA_W1, KA_W3, KA_W2, KA_OUT, KA_DBG, KA_WS = [8 * i for i in range(12)]


class Asm:
    def __init__(self):
        self.lines = []

    def __call__(self, s):
        for l in s.strip("\n").split("\n"):
            self.lines.append("    " + l.strip())

    def label(self, l):
        self.lines.append(l + ":")

    def raw(self, s):
        self.lines.append(s)

    def comment(self, s):
        self.lines.append("    ; " + s)

    def extend(self, lst):
        for l in lst:
            self(l)

    def text(self):
        return "\n".join(self.lines) + "\n"


def vr(b, n=1):
    return f"v{b}" if n == 1 else f"v[{b}:{b+n-1}]"


def sr(b, n=1):
    return f"s{b}" if n == 1 else f"s[{b}:{b+n-1}]"


def srd(a, dst, base, nbytes):
    a(f"s_mov_b32 s{dst}, s{base}")
    a(f"s_and_b32 s{dst+1}, s{base+1}, 0xffff")
    a(f"s_mov_b32 s{dst+2}, {nbytes:#x}")
    a(f"s_mov_b32 s{dst+3}, 0x00020000")


def mfma32(d, a_, b_, c=None):
    cs = vr(d, 16) if c is None else c
    return f"v_mfma_f32_32x32x16_bf16 {vr(d,16)}, {vr(a_,4)}, {vr(b_,4)}, {cs}"


def kernel_begin(a, name):
    a.raw(f".globl {name}")
    a.raw(".p2align 8")
    a.raw(f".type {name},@function")
    a.label(name)


def kernel_desc(name, vgpr, sgpr=102):
    acc = (vgpr + 3) // 4 * 4
    return f""".amdhsa_kernel {name}
  .amdhsa_next_free_vgpr {vgpr}
  .amdhsa_next_free_sgpr {sgpr}
  .amdhsa_accum_offset {acc}
  .amdhsa_group_segment_fixed_size 0
  .amdhsa_kernarg_size 96
  .amdhsa_user_sgpr_count 2
  .amdhsa_user_sgpr_kernarg_segment_ptr 1
  .amdhsa_system_sgpr_workgroup_id_x 1
.end_amdhsa_kernel
"""


def interleave(mfmas, fillers, start=0, per=None):
    n = len(mfmas) - start
    out = []
    slots = [[] for _ in mfmas]
    nf = len(fillers)
    for i, f in enumerate(fillers):
        if per is None:
            idx = start + (i * n) // max(nf, 1)
        else:
            idx = min(start + i // per, len(mfmas) - 1)
        slots[idx].extend(f)
    for m, s in zip(mfmas, slots):
        out.append(m)
        out.extend(s)
    return out

import os
STAMP = int(os.environ.get("STAMP", "0"))
WS_DBG = 0x4000000

def stamp(a, i):
    if STAMP:
        a(f"s_memtime s[{68+4*i}:{69+4*i}]")
        a(f"s_memrealtime s[{70+4*i}:{71+4*i}]")

def stamp_begin(a):
    if STAMP:
        for i in range(8):
            a(f"s_mov_b32 s{68+4*i}, 0")
            a(f"s_mov_b32 s{70+4*i}, 0")
        stamp(a, 0)

def stamp_end(a, kidx, swave, nwaves, sws, vtmp):
    if not STAMP:
        return
    a("s_waitcnt vmcnt(0)")
    stamp(a, 7)
    a("s_waitcnt lgkmcnt(0)")
    a("s_mov_b64 exec, 1")
    for i in range(8):
        a(f"v_mov_b32 v{vtmp+i}, s{68+4*i}")
        a(f"v_mov_b32 v{vtmp+8+i}, s{70+4*i}")
    a(f"s_getreg_b32 s100, hwreg(HW_REG_HW_ID)")
    a(f"v_mov_b32 v{vtmp+16}, s100")
    a(f"s_getreg_b32 s100, hwreg(HW_REG_XCC_ID)")
    a(f"v_mov_b32 v{vtmp+17}, s100")
    a(f"s_mul_i32 s100, s2, {nwaves}")
    a(f"s_add_u32 s100, s100, s{swave}")
    a(f"s_lshl_b32 s100, s100, 7")
    a(f"s_add_u32 s100, s100, {WS_DBG + kidx * 0x100000}")
    a(f"v_mov_b32 v{vtmp+20}, 0")
    for i in range(5):
        a(f"buffer_store_dwordx4 v[{vtmp+4*i}:{vtmp+4*i+3}], v{vtmp+20}, s[{sws}:{sws+3}], s100 offen offset:{16*i}")

ST_FLAGS = os.environ.get("STFLAGS", "sc1")
if ST_FLAGS: ST_FLAGS = " " + ST_FLAGS


class Filt:
    def __init__(self, a, drop):
        self.a = a
        self.drop = drop
    def __call__(self, l):
        if not any(d in l for d in self.drop):
            self.a(l)
    def extend(self, ls):
        for l in ls:
            self(l)
    def raw(self, l): self.a.raw(l)
    def label(self, l): self.a.label(l)
    def comment(self, l): self.a.comment(l)

def abl(name):
    v = os.environ.get(name, "")
    return [x for x in v.split("|") if x]


CODEPF = int(os.environ.get("CODEPF", "0"))
_cpf = [0]

def code_prefetch(a, start_label, end_label, seg_sgpr, vlane, vt, s0, nseg_max=4):
    if not CODEPF:
        return
    _cpf[0] += 1
    L = f"CPF{_cpf[0]}"
    a(f"s_getpc_b64 s[{s0}:{s0+1}]")
    a.label(L)
    a(f"s_add_u32 s{s0}, s{s0}, {start_label}-{L}")
    a(f"s_addc_u32 s{s0+1}, s{s0+1}, 0")
    a(f"s_lshl_b32 s{s0+2}, s{seg_sgpr}, 13")
    a(f"v_lshl_add_u32 v{vt+2}, v{vlane}, 7, s{s0+2}")
    a(f"v_mov_b32 v{vt+1}, s{s0+1}")
    a(f"v_add_co_u32 v{vt}, vcc, s{s0}, v{vt+2}")
    a("s_nop 1")
    a(f"v_addc_co_u32 v{vt+1}, vcc, 0, v{vt+1}, vcc")
    a(f"v_cmp_gt_u32 vcc, {end_label}-{start_label}, v{vt+2}")
    a(f"s_and_saveexec_b64 s[{s0}:{s0+1}], vcc")
    a(f"s_cbranch_execz {L}_skip")
    a(f"global_load_dword v{vt+3}, v[{vt}:{vt+1}], off")
    a.label(f"{L}_skip")
    a("s_mov_b64 exec, -1")
```

```python
import sys, importlib
from common import *

HEADER = open("cdna_kernels/" + KNAME + ".s.ref").read().split("; Override launch")[0]

DOC = """;
"""

def build(mods, out):
    ms = [importlib.import_module(m) for m in mods]
    a = Asm()
    for m in ms:
        m.gen(a)
    txt = HEADER
    for m in ms:
        txt += m.LAUNCH + "\n"
    txt += DOC
    txt += '.amdgcn_target "amdgcn-amd-amdhsa--gfx950"\n.text\n'
    txt += a.text()
    txt += '.section .rodata,"a"\n'
    for m in ms:
        txt += ".p2align 6\n" + m.DESC
    open(out, "w").write(txt)

if __name__ == "__main__":
    out = sys.argv[1]
    build(sys.argv[2:], out)
```

```python
KNAME = "parallel_sum__grouped_kv_mqa__glu_gated_swiglu__prompt"

S, D, F, H, DH = 2048, 576, 4608, 32, 18

WS_H  = 0x0000000
WS_Q1 = 0x1200000
WS_Q2 = 0x1400000
WS_KV = 0x1440000
WS_O  = 0x1480000
WS_P  = 0x1700000
WS_ST = 0x2a00000
WS_CS = 0x2a10000
WS_SIZE = 0x10000000

NSPLIT = 5
KV_CHUNK = 20480
KV_K1 = 0
KV_V = 8192
KV_K2 = 18432
V_BLK = 640

KA_X, KA_WQ, KA_WK, KA_WV, KA_WO, KA_BX, KA_W1, KA_W3, KA_W2, KA_OUT, KA_DBG, KA_WS = [8 * i for i in range(12)]


class Asm:
    def __init__(self):
        self.lines = []

    def __call__(self, s):
        for l in s.strip("\n").split("\n"):
            self.lines.append("    " + l.strip())

    def label(self, l):
        self.lines.append(l + ":")

    def raw(self, s):
        self.lines.append(s)

    def comment(self, s):
        self.lines.append("    ; " + s)

    def extend(self, lst):
        for l in lst:
            self(l)

    def text(self):
        return "\n".join(self.lines) + "\n"


def vr(b, n=1):
    return f"v{b}" if n == 1 else f"v[{b}:{b+n-1}]"


def sr(b, n=1):
    return f"s{b}" if n == 1 else f"s[{b}:{b+n-1}]"


def srd(a, dst, base, nbytes):
    a(f"s_mov_b32 s{dst}, s{base}")
    a(f"s_and_b32 s{dst+1}, s{base+1}, 0xffff")
    a(f"s_mov_b32 s{dst+2}, {nbytes:#x}")
    a(f"s_mov_b32 s{dst+3}, 0x00020000")


def mfma32(d, a_, b_, c=None):
    cs = vr(d, 16) if c is None else c
    return f"v_mfma_f32_32x32x16_bf16 {vr(d,16)}, {vr(a_,4)}, {vr(b_,4)}, {cs}"


def kernel_begin(a, name):
    a.raw(f".globl {name}")
    a.raw(".p2align 8")
    a.raw(f".type {name},@function")
    a.label(name)


def kernel_desc(name, vgpr, sgpr=102):
    acc = (vgpr + 3) // 4 * 4
    return f""".amdhsa_kernel {name}
  .amdhsa_next_free_vgpr {vgpr}
  .amdhsa_next_free_sgpr {sgpr}
  .amdhsa_accum_offset {acc}
  .amdhsa_group_segment_fixed_size 0
  .amdhsa_kernarg_size 96
  .amdhsa_user_sgpr_count 2
  .amdhsa_user_sgpr_kernarg_segment_ptr 1
  .amdhsa_system_sgpr_workgroup_id_x 1
.end_amdhsa_kernel
"""


def interleave(mfmas, fillers, start=0, per=None):
    n = len(mfmas) - start
    out = []
    slots = [[] for _ in mfmas]
    nf = len(fillers)
    for i, f in enumerate(fillers):
        if per is None:
            idx = start + (i * n) // max(nf, 1)
        else:
            idx = min(start + i // per, len(mfmas) - 1)
        slots[idx].extend(f)
    for m, s in zip(mfmas, slots):
        out.append(m)
        out.extend(s)
    return out

import os
STAMP = int(os.environ.get("STAMP", "0"))
WS_DBG = 0x4000000

def stamp(a, i):
    if STAMP:
        a(f"s_memtime s[{68+4*i}:{69+4*i}]")
        a(f"s_memrealtime s[{70+4*i}:{71+4*i}]")

def stamp_begin(a):
    if STAMP:
        for i in range(8):
            a(f"s_mov_b32 s{68+4*i}, 0")
            a(f"s_mov_b32 s{70+4*i}, 0")
        stamp(a, 0)

def stamp_end(a, kidx, swave, nwaves, sws, vtmp):
    if not STAMP:
        return
    if kidx >= 2:
        a("s_waitcnt vmcnt(0)")
    stamp(a, 7)
    a("s_waitcnt lgkmcnt(0)")
    a("s_mov_b64 exec, 1")
    for i in range(8):
        a(f"v_mov_b32 v{vtmp+i}, s{68+4*i}")
        a(f"v_mov_b32 v{vtmp+8+i}, s{70+4*i}")
    a(f"s_getreg_b32 s100, hwreg(HW_REG_HW_ID)")
    a(f"v_mov_b32 v{vtmp+16}, s100")
    a(f"s_getreg_b32 s100, hwreg(HW_REG_XCC_ID)")
    a(f"v_mov_b32 v{vtmp+17}, s100")
    a(f"s_mul_i32 s100, s2, {nwaves}")
    a(f"s_add_u32 s100, s100, s{swave}")
    a(f"s_lshl_b32 s100, s100, 7")
    a(f"s_add_u32 s100, s100, {WS_DBG + kidx * 0x100000}")
    a(f"v_mov_b32 v{vtmp+20}, 0")
    for i in range(5):
        a(f"buffer_store_dwordx4 v[{vtmp+4*i}:{vtmp+4*i+3}], v{vtmp+20}, s[{sws}:{sws+3}], s100 offen offset:{16*i}")

ST_FLAGS = os.environ.get("STFLAGS", "sc1")
if ST_FLAGS: ST_FLAGS = " " + ST_FLAGS


class Filt:
    def __init__(self, a, drop):
        self.a = a
        self.drop = drop
    def __call__(self, l):
        if not any(d in l for d in self.drop):
            self.a(l)
    def extend(self, ls):
        for l in ls:
            self(l)
    def raw(self, l): self.a.raw(l)
    def label(self, l): self.a.label(l)
    def comment(self, l): self.a.comment(l)

def abl(name):
    v = os.environ.get(name, "")
    return [x for x in v.split("|") if x]


CODEPF = int(os.environ.get("CODEPF", "2"))
_cpf = [0]

def code_prefetch(a, start_label, end_label, seg_sgpr, vlane, vt, s0, nseg_max=4):
    if not CODEPF:
        return
    _cpf[0] += 1
    L = f"CPF{_cpf[0]}"
    a(f"s_getpc_b64 s[{s0}:{s0+1}]")
    a.label(L)
    a(f"s_add_u32 s{s0}, s{s0}, {start_label}-{L}")
    a(f"s_addc_u32 s{s0+1}, s{s0+1}, 0")
    a(f"s_lshl_b32 s{s0+2}, s{seg_sgpr}, 13")
    a(f"v_lshl_add_u32 v{vt+2}, v{vlane}, 7, s{s0+2}")
    a(f"v_mov_b32 v{vt+1}, s{s0+1}")
    a(f"v_add_co_u32 v{vt}, vcc, s{s0}, v{vt+2}")
    a("s_nop 1")
    a(f"v_addc_co_u32 v{vt+1}, vcc, 0, v{vt+1}, vcc")
    a(f"v_cmp_gt_u32 vcc, {end_label}-{start_label}, v{vt+2}")
    a(f"s_and_saveexec_b64 s[{s0}:{s0+1}], vcc")
    a(f"s_cbranch_execz {L}_skip")
    a(f"global_load_dword v{vt+3}, v[{vt}:{vt+1}], off")
    a.label(f"{L}_skip")
    a("s_mov_b64 exec, -1")
```
